```python
import torch

def _softmax(x, axis=-1):
    return torch.softmax(x, dim=axis)
def _gelu(x):
    return torch.nn.functional.gelu(x, approximate="tanh")
def _silu(x):
    return torch.nn.functional.silu(x)
def _sigmoid(x):
    return torch.sigmoid(x)
def _layernorm(x, axis=-1, eps=1e-5):
    m = x.mean(dim=axis, keepdim=True)
    v = x.var(dim=axis, keepdim=True, unbiased=False)
    return (x - m) / torch.sqrt(v + eps)
def _scatter_add(tgt, idx, src, axis=0):
    return tgt.clone().index_add_(axis, idx, src)
def _segment_sum(src, seg, n):
    out = torch.zeros((n,) + src.shape[1:], dtype=src.dtype)
    return out.index_add_(0, seg, src)
def _pad(x, pw):
    flat = tuple(v for pair in reversed(pw) for v in pair)
    return torch.nn.functional.pad(x, flat)

kernel_name = 'parallel_sum__ssm_conv_s5__mixer_channel_mlp__prompt'

def setup_inputs():

    _w = (lambda a: (lambda t: t.to(torch.bfloat16) if t.is_floating_point() else t)(torch.as_tensor(a)))
    def _A_setup():
        B, S, D = 1, 2048, 448
        P = D
        Lambda_re = -0.5 * (lambda _x: torch.exp(torch.as_tensor(_x)))((lambda *s: torch.randn(*s, dtype=torch.bfloat16) * 0.2)(P))
        Lambda_im = (lambda *s: torch.randn(*s, dtype=torch.bfloat16) * 0.8)(P) * 1.0
        B_re = (lambda *s: torch.randn(*s, dtype=torch.bfloat16) * 0.2)(P, D) * (D ** -0.5)
        B_im = (lambda *s: torch.randn(*s, dtype=torch.bfloat16) * 0.2)(P, D) * (D ** -0.5)
        C_re = (lambda *s: torch.randn(*s, dtype=torch.bfloat16) * 0.2)(D, P) * (P ** -0.5)
        C_im = (lambda *s: torch.randn(*s, dtype=torch.bfloat16) * 0.2)(D, P) * (P ** -0.5)
        log_dt = (lambda *s: torch.randn(*s, dtype=torch.bfloat16) * 0.2)(P) * 0.3 - 2.0
        Dskip = (lambda *s: torch.randn(*s, dtype=torch.bfloat16) * 0.05)(D)
        return {
            "x": _w((lambda *s: torch.randn(*s, dtype=torch.bfloat16) * 0.05)(B, S, D)),
            "Lambda_re": _w(Lambda_re),
            "Lambda_im": _w(Lambda_im),
            "B_re": _w(B_re),
            "B_im": _w(B_im),
            "C_re": _w(C_re),
            "C_im": _w(C_im),
            "log_dt": _w(log_dt),
            "Dskip": _w(Dskip),
        }
    _A_in = _A_setup()

    def _B_setup():
        B, S, D, F = 1, 2048, 448, 1792
        return {
            "x": _w((lambda *s: torch.randn(*s, dtype=torch.bfloat16) * 0.05)(B, S, D)),
            "w1": _w((lambda *s: torch.randn(*s, dtype=torch.bfloat16) * 1.6)(D, F) * (D ** -0.5)),
            "b1": _w((lambda *s: torch.randn(*s, dtype=torch.bfloat16) * 0.8)(F)),
            "w2": _w((lambda *s: torch.randn(*s, dtype=torch.bfloat16) * 0.05)(F, D) * (F ** -0.5)),
            "b2": _w((lambda *s: torch.randn(*s, dtype=torch.bfloat16) * 0.05)(D)),
        }
    _B_in = _B_setup()

    return {
        "A_x": _A_in["x"],
        "A_Lambda_re": _A_in["Lambda_re"],
        "A_Lambda_im": _A_in["Lambda_im"],
        "A_B_re": _A_in["B_re"],
        "A_B_im": _A_in["B_im"],
        "A_C_re": _A_in["C_re"],
        "A_C_im": _A_in["C_im"],
        "A_log_dt": _A_in["log_dt"],
        "A_Dskip": _A_in["Dskip"],
        "B_x": _B_in["x"],
        "B_w1": _B_in["w1"],
        "B_b1": _B_in["b1"],
        "B_w2": _B_in["w2"],
        "B_b2": _B_in["b2"],
    }

def reference(A_x, A_Lambda_re, A_Lambda_im, A_B_re, A_B_im, A_C_re, A_C_im, A_log_dt, A_Dskip, B_x, B_w1, B_b1, B_w2, B_b2):
    def _A_ref(x, Lambda_re, Lambda_im, B_re, B_im, C_re, C_im, log_dt, Dskip):
        Bsz, L, H = x.shape
        Lam = Lambda_re + 1j * Lambda_im
        Bmat = B_re + 1j * B_im
        Cmat = C_re + 1j * C_im
        dt = torch.exp(log_dt)
        Lam_bar = torch.exp(dt * Lam)
        B_bar = ((Lam_bar - 1.0) / Lam)[:, None] * Bmat
        Bu = torch.einsum("bld,pd->blp", x + 0j, B_bar)
        h = torch.zeros_like(Bu[:, 0, :])
        hs = []
        for t in range(L):
            h = Lam_bar[None, :] * h + Bu[:, t, :]
            hs.append(h)
        hseq = torch.stack(hs, 1)
        y = 2.0 * torch.einsum("blp,dp->bld", hseq, Cmat).real + x * Dskip[None, None, :]
        return y

    def _B_ref(x, w1, b1, w2, b2):
        y = _layernorm(x, axis=-1)
        h = _gelu(torch.einsum("bsd,df->bsf", y, w1) + b1)
        return torch.einsum("bsf,fd->bsd", h, w2) + b2

    x = A_x
    xn = _layernorm(x, axis=-1)
    return x + _A_ref(xn, A_Lambda_re, A_Lambda_im, A_B_re, A_B_im, A_C_re, A_C_im, A_log_dt, A_Dskip) + _B_ref(xn, B_w1, B_b1, B_w2, B_b2)
```

```python
class Asm:
    def __init__(self):
        self.L = []
    def __call__(self, s):
        for l in s.split("\n"):
            self.L.append(l)
    def text(self):
        return "\n".join(self.L) + "\n"

def vr(a, n=1):
    return f"v{a}" if n == 1 else f"v[{a}:{a+n-1}]"
def ar(a, n=1):
    return f"a{a}" if n == 1 else f"a[{a}:{a+n-1}]"
def sr(a, n=1):
    return f"s{a}" if n == 1 else f"s[{a}:{a+n-1}]"

KA = dict(x=0, lre=8, lim=16, bre=24, bim=32, cre=40, cim=48, logdt=56, dskip=64, bx=72,
          w1=80, b1=88, w2=96, b2=104, out=112, dbg=120, ws=128)

def kernel_header(A, name):
    A(f".globl {name}\n.p2align 8\n.type {name},@function\n{name}:")

def kernel_desc(A, name, vgpr, sgpr, accum=None, agpr=0):
    acc = accum if accum is not None else ((vgpr + 3) // 4) * 4
    nfv = acc + agpr if agpr else vgpr
    A(f""".amdhsa_kernel {name}
  .amdhsa_next_free_vgpr {nfv}
  .amdhsa_next_free_sgpr {sgpr}
  .amdhsa_accum_offset {acc}
  .amdhsa_group_segment_fixed_size 0
  .amdhsa_kernarg_size 136
  .amdhsa_user_sgpr_count 2
  .amdhsa_user_sgpr_kernarg_segment_ptr 1
  .amdhsa_system_sgpr_workgroup_id_x 1
  .amdhsa_float_denorm_mode_32 3
.end_amdhsa_kernel""")

def srd(A, d, base_lo, base_hi, nbytes, off=0):
    if off:
        A(f"s_add_u32 s{d}, s{base_lo}, {off}")
        A(f"s_addc_u32 s{d+1}, s{base_hi}, 0")
    else:
        A(f"s_mov_b32 s{d}, s{base_lo}")
        A(f"s_mov_b32 s{d+1}, s{base_hi}")
    A(f"s_mov_b32 s{d+2}, {nbytes}")
    A(f"s_mov_b32 s{d+3}, 0x20000")

def wave_reduce_sum(A, v, sdst):
    for sh in (1, 2, 4, 8):
        A("s_nop 1")
        A(f"v_add_f32_dpp v{v}, v{v}, v{v} row_shr:{sh} row_mask:0xf bank_mask:0xf bound_ctrl:0")
    A("s_nop 1")
    A(f"v_add_f32_dpp v{v}, v{v}, v{v} row_bcast:15 row_mask:0xa bank_mask:0xf")
    A("s_nop 1")
    A(f"v_add_f32_dpp v{v}, v{v}, v{v} row_bcast:31 row_mask:0xc bank_mask:0xf")
    A("s_nop 1")
    A(f"v_readlane_b32 s{sdst}, v{v}, 63")
    A("s_nop 1")
```

```python
import sys
from asmlib import *

MIMIC = int(sys.argv[2]) if len(sys.argv) > 2 else 1
NOISE = float(sys.argv[3]) if len(sys.argv) > 3 else 0.0
EXTRA = int(sys.argv[4]) if len(sys.argv) > 4 else 0

XN_T, Y_T, W1_T, BW_T, W2C_T, ACAT_T, BU, SKIP = 0x0, 0x200000, 0x400000, 0x600000, 0x700000, 0xA00000, 0x1500000, 0x1D00000
SZ_XN = 64*28*1024; SZ_W1 = 56*28*1024; SZ_BW = 28*28*1024; SZ_W2C = 14*168*1024; SZ_ACAT = 64*168*1024
SZ_BU = 2048*896*4; SZ_SKIP = 2048*448*2

A = Asm()
N_LN = 512
N_W1, N_BW, N_W2, N_C = 1568//4, 784//4, (14*112)//4, (14*56)//4
PREP_GRID = N_LN + N_W1 + N_BW + N_W2 + N_C
hdr = open("parallel_sum__ssm_conv_s5__mixer_channel_mlp__prompt.s.ref").read().split("; Override")[0]
A(hdr.rstrip())
A(f"; @launch kernel=prep_kernel grid=({PREP_GRID},1,1) block=(256,1,1) lds=0")
A(f"; @launch kernel=gemm1_kernel grid=(336,1,1) block=(256,1,1) lds=0")
A(f"; @launch kernel=scan_kernel grid=(7,1,1) block=(64,1,1) lds=0")
A(f"; @launch kernel=gemm2_kernel grid=(224,1,1) block=(256,1,1) lds=69632")
for i in range(EXTRA):
    A(f"; @launch kernel=nop_kernel grid=(1,1,1) block=(64,1,1) lds=0")
A('.amdgcn_target "amdgcn-amd-amdhsa--gfx950"\n.text')

def bf16_round_pair(dst_lo, dst_hi, a, b, tmp):
    A(f"v_cvt_pk_bf16_f32 v{tmp}, v{a}, v{b}")
    A(f"v_lshlrev_b32 v{dst_lo}, 16, v{tmp}")
    A(f"v_and_b32 v{dst_hi}, 0xffff0000, v{tmp}")

def s_bf16_round(sreg, vt):
    A(f"v_mov_b32 v{vt}, s{sreg}")
    A(f"v_cvt_pk_bf16_f32 v{vt}, v{vt}, v{vt}")
    A(f"v_lshlrev_b32 v{vt}, 16, v{vt}")
    A("s_nop 0")
    A(f"v_readfirstlane_b32 s{sreg}, v{vt}")
    A("s_nop 1")

def layernorm_regs(X, T):
    A("s_mov_b64 exec, -1")
    A(f"v_add_f32 v{T}, v{X}, v{X+1}")
    for i in range(2, 8):
        A(f"v_add_f32 v{T}, v{T}, v{X+i}")
    A(f"v_cndmask_b32 v{T}, 0, v{T}, s[40:41]")
    wave_reduce_sum(A, T, 42)
    A(f"v_mov_b32 v{T}, s42")
    A(f"v_mul_f32 v{T}, 0x3b124925, v{T}   ; 1/448")
    A("s_nop 0")
    A(f"v_readfirstlane_b32 s42, v{T}")
    A("s_nop 1")
    A(f"v_subrev_f32 v{T+1}, s42, v{X}")
    A(f"v_mul_f32 v{T}, v{T+1}, v{T+1}")
    for i in range(1, 8):
        A(f"v_subrev_f32 v{T+1}, s42, v{X+i}")
        A(f"v_fmac_f32 v{T}, v{T+1}, v{T+1}")
    A(f"v_cndmask_b32 v{T}, 0, v{T}, s[40:41]")
    wave_reduce_sum(A, T, 43)
    A(f"v_mov_b32 v{T}, s43")
    A(f"v_mul_f32 v{T}, 0x3b124925, v{T}")
    A("s_nop 0")
    A(f"v_readfirstlane_b32 s43, v{T}")
    A("s_nop 1")
    s_bf16_round(42, T)
    s_bf16_round(43, T)
    A(f"v_mov_b32 v{T}, s43")
    A(f"v_add_f32 v{T}, 0x3727c5ac, v{T}   ; +1e-5")
    A(f"v_cvt_pk_bf16_f32 v{T}, v{T}, v{T}")
    A(f"v_lshlrev_b32 v{T}, 16, v{T}")
    A(f"v_sqrt_f32 v{T}, v{T}")
    A("s_nop 0")
    A(f"v_cvt_pk_bf16_f32 v{T}, v{T}, v{T}")
    A(f"v_lshlrev_b32 v{T}, 16, v{T}")
    A(f"v_rcp_f32 v{T}, v{T}")
    A("s_nop 0")
    for i in range(0, 8, 2):
        A(f"v_subrev_f32 v{X+i}, s42, v{X+i}")
        A(f"v_subrev_f32 v{X+i+1}, s42, v{X+i+1}")
        bf16_round_pair(X+i, X+i+1, X+i, X+i+1, T+1)
        A(f"v_mul_f32 v{X+i}, v{X+i}, v{T}")
        A(f"v_mul_f32 v{X+i+1}, v{X+i+1}, v{T}")
        bf16_round_pair(X+i, X+i+1, X+i, X+i+1, T+1)

def pack8(dst, X):
    for i in range(4):
        A(f"v_cvt_pk_bf16_f32 v{dst+i}, v{X+2*i}, v{X+2*i+1}")

kernel_header(A, "prep_kernel")
A(f"""s_cmp_ge_u32 s2, {PREP_GRID}
s_cbranch_scc1 prep_done
s_load_dwordx2 s[4:5], s[0:1], {KA['x']}
s_load_dwordx2 s[6:7], s[0:1], {KA['ws']}
s_load_dwordx2 s[8:9], s[0:1], {KA['dskip']}
s_load_dwordx4 s[12:15], s[0:1], {KA['bre']}
s_load_dwordx4 s[16:19], s[0:1], {KA['cre']}
s_load_dwordx2 s[20:21], s[0:1], {KA['w1']}
s_load_dwordx2 s[22:23], s[0:1], {KA['w2']}
v_lshrrev_b32 v1, 6, v0
v_and_b32 v0, 63, v0
s_nop 0
v_readfirstlane_b32 s3, v1
s_waitcnt lgkmcnt(0)
s_cmp_ge_u32 s2, {N_LN}
s_cbranch_scc1 prep_tiles
s_lshl_b32 s24, s2, 2
s_add_u32 s24, s24, s3            ; row
v_cmp_gt_u32 vcc, 56, v0
s_mov_b64 s[40:41], vcc
s_mul_i32 s25, s24, 896
s_add_u32 s26, s4, s25
s_addc_u32 s27, s5, 0
v_lshlrev_b32 v1, 4, v0           ; lane*16
v_mov_b32 v4, 0
v_mov_b32 v5, 0
v_mov_b32 v6, 0
v_mov_b32 v7, 0
v_mov_b32 v8, 0
v_mov_b32 v9, 0
v_mov_b32 v10, 0
v_mov_b32 v11, 0
s_mov_b64 exec, s[40:41]
global_load_dwordx4 v[4:7], v1, s[26:27]
global_load_dwordx4 v[8:11], v1, s[8:9]
s_mov_b64 exec, -1
s_waitcnt vmcnt(0)""")
X = 12
for i in range(4):
    A(f"v_lshlrev_b32 v{X+2*i}, 16, v{4+i}")
    A(f"v_and_b32 v{X+2*i+1}, 0xffff0000, v{4+i}")
layernorm_regs(X, 30)
A("""s_lshr_b32 s25, s24, 5
s_mul_i32 s25, s25, 28*1024
s_and_b32 s28, s24, 31
s_lshl_b32 s28, s28, 4
s_add_u32 s25, s25, s28
v_lshrrev_b32 v2, 1, v0
v_lshlrev_b32 v2, 10, v2
v_and_b32 v3, 1, v0
v_lshlrev_b32 v3, 9, v3
v_add3_u32 v2, v2, v3, s25""")
pack8(20, X)
A(f"s_add_u32 s30, s6, {XN_T}\ns_addc_u32 s31, s7, 0")
A("s_mov_b64 exec, s[40:41]")
A("global_store_dwordx4 v2, v[20:23], s[30:31]")
A("s_mov_b64 exec, -1")
for i in range(4):
    A(f"v_lshlrev_b32 v32, 16, v{8+i}")
    A(f"v_and_b32 v33, 0xffff0000, v{8+i}")
    A(f"v_mul_f32 v32, v32, v{X+2*i}")
    A(f"v_mul_f32 v33, v33, v{X+2*i+1}")
    A(f"v_cvt_pk_bf16_f32 v{24+i}, v32, v33")
A(f"s_mul_i32 s25, s24, 896\ns_add_u32 s30, s6, s25\ns_addc_u32 s31, s7, 0\ns_add_u32 s30, s30, {SKIP}\ns_addc_u32 s31, s31, 0")
A("s_mov_b64 exec, s[40:41]")
A("global_store_dwordx4 v1, v[24:27], s[30:31]")
A("s_mov_b64 exec, -1")
layernorm_regs(X, 30)
pack8(20, X)
A(f"s_add_u32 s30, s6, {Y_T}\ns_addc_u32 s31, s7, 0")
A("s_mov_b64 exec, s[40:41]")
A("global_store_dwordx4 v2, v[20:23], s[30:31]")
A("s_endpgm")
A("prep_tiles:")
A(f"""s_sub_u32 s24, s2, {N_LN}
s_lshl_b32 s24, s24, 2
s_add_u32 s24, s24, s3
v_and_b32 v1, 31, v0              ; r
v_lshrrev_b32 v2, 5, v0           ; h
v_lshlrev_b32 v3, 4, v0           ; lane*16
s_cmp_lt_u32 s24, {N_W1*4}
s_cbranch_scc1 prep_w1
s_sub_u32 s24, s24, {N_W1*4}
s_cmp_lt_u32 s24, {N_BW*4}
s_cbranch_scc1 prep_bw
s_sub_u32 s24, s24, {N_BW*4}
s_cmp_lt_u32 s24, {N_W2*4}
s_cbranch_scc1 prep_w2
s_sub_u32 s24, s24, {N_W2*4}""")
def div_const(dst, src, c, maxv):
    sh = 20
    m = -(-(1 << sh) // c)
    for v in range(maxv):
        assert (v*m) >> sh == v // c
    assert (maxv-1)*m < 2**32
    A(f"s_mul_i32 s{dst}, s{src}, {m}\ns_lshr_b32 s{dst}, s{dst}, {sh}")
div_const(25, 24, 56, 14*56)
A("""s_mul_i32 s26, s25, 56
s_sub_u32 s26, s24, s26           ; kk
s_mov_b32 s28, s16
s_mov_b32 s29, s17
s_mov_b32 s27, s26
s_cmp_lt_u32 s26, 28
s_cbranch_scc1 prep_c1
s_mov_b32 s28, s18
s_mov_b32 s29, s19
s_sub_u32 s27, s26, 28
prep_c1:
s_mul_i32 s30, s25, 32*896
s_lshl_b32 s31, s27, 5
s_add_u32 s30, s30, s31
v_mul_u32_u24 v4, 896, v1
v_lshl_add_u32 v4, v2, 4, v4
v_add_u32 v4, s30, v4
global_load_dwordx4 v[8:11], v4, s[28:29]
s_mul_i32 s30, s25, 168
s_add_u32 s30, s30, s26
s_add_u32 s30, s30, 112
s_lshl_b32 s30, s30, 10
""" + f"s_add_u32 s30, s30, {W2C_T}" + """
s_add_u32 s30, s6, s30
s_addc_u32 s31, s7, 0
s_waitcnt vmcnt(0)
global_store_dwordx4 v3, v[8:11], s[30:31]
s_endpgm""")
A("prep_bw:")
div_const(25, 24, 28, 28*28)
A("""s_mul_i32 s26, s25, 28
s_sub_u32 s26, s24, s26           ; kt
s_mov_b32 s28, s12
s_mov_b32 s29, s13
s_mov_b32 s27, s25
s_cmp_lt_u32 s25, 14
s_cbranch_scc1 prep_b1
s_mov_b32 s28, s14
s_mov_b32 s29, s15
s_sub_u32 s27, s25, 14
prep_b1:
s_mul_i32 s30, s27, 32*896
s_lshl_b32 s31, s26, 5
s_add_u32 s30, s30, s31
v_mul_u32_u24 v4, 896, v1
v_lshl_add_u32 v4, v2, 4, v4
v_add_u32 v4, s30, v4
global_load_dwordx4 v[8:11], v4, s[28:29]
s_lshl_b32 s30, s24, 10
""" + f"s_add_u32 s30, s30, {BW_T}" + """
s_add_u32 s30, s6, s30
s_addc_u32 s31, s7, 0
s_waitcnt vmcnt(0)
global_store_dwordx4 v3, v[8:11], s[30:31]
s_endpgm""")
def gather8(base_s, rowstride, ks):
    for j, k in enumerate(ks):
        A(f"v_add_u32 v5, {k*rowstride}, v4")
        A(f"global_load_ushort v{12+j}, v5, s[{base_s}:{base_s+1}]")
    A("s_waitcnt vmcnt(0)")
    for j in range(4):
        A(f"v_lshl_or_b32 v{8+j}, v{12+2*j+1}, 16, v{12+2*j}")
A("prep_w1:")
div_const(25, 24, 28, 56*28)
A("""s_mul_i32 s26, s25, 28
s_sub_u32 s26, s24, s26           ; kt
s_mul_i32 s30, s26, 16*3584
s_lshl_b32 s31, s25, 6
s_add_u32 s30, s30, s31
v_mul_u32_u24 v4, 8*3584, v2
v_lshl_add_u32 v4, v1, 1, v4
v_add_u32 v4, s30, v4""")
gather8(20, 3584, range(8))
A("s_lshl_b32 s30, s24, 10\n" + f"s_add_u32 s30, s30, {W1_T}" + """
s_add_u32 s30, s6, s30
s_addc_u32 s31, s7, 0
global_store_dwordx4 v3, v[8:11], s[30:31]
s_endpgm""")
A("prep_w2:")
div_const(25, 24, 112, 14*112)
A("""s_mul_i32 s26, s25, 112
s_sub_u32 s26, s24, s26           ; kt
s_mul_i32 s30, s26, 16*896
s_lshl_b32 s31, s25, 6
s_add_u32 s30, s30, s31
v_mul_u32_u24 v4, 4*896, v2
v_lshl_add_u32 v4, v1, 1, v4
v_add_u32 v4, s30, v4""")
gather8(22, 896, [0, 1, 2, 3, 8, 9, 10, 11])
A("""s_mul_i32 s30, s25, 168
s_add_u32 s30, s30, s26
s_lshl_b32 s30, s30, 10
""" + f"s_add_u32 s30, s30, {W2C_T}" + """
s_add_u32 s30, s6, s30
s_addc_u32 s31, s7, 0
global_store_dwordx4 v3, v[8:11], s[30:31]
prep_done:
s_endpgm""")

def kloop(FR, ACC, swap, sA, sB, sCnt, label):
    def loads(j, imm):
        b = FR + 16*j
        A(f"buffer_load_dwordx4 v[{b}:{b+3}], v2, s[{sA}:{sA+3}], s20 offen")
        A(f"buffer_load_dwordx4 v[{b+4}:{b+7}], v3, s[{sA}:{sA+3}], s20 offen")
        A(f"buffer_load_dwordx4 v[{b+8}:{b+11}], v4, s[{sB}:{sB+3}], s20 offen")
        A(f"buffer_load_dwordx4 v[{b+12}:{b+15}], v5, s[{sB}:{sB+3}], s20 offen")
        A("s_add_u32 s20, s20, 1024")
    def mfmas(j):
        b = FR + 16*j
        for i in range(2):
            for jj in range(2):
                acc = ACC + 16*(2*i+jj)
                t = f"v[{b+4*i}:{b+4*i+3}]"; w = f"v[{b+8+4*jj}:{b+8+4*jj+3}]"
                if swap: A(f"v_mfma_f32_32x32x16_bf16 v[{acc}:{acc+15}], {t}, {w}, v[{acc}:{acc+15}]")
                else:    A(f"v_mfma_f32_32x32x16_bf16 v[{acc}:{acc+15}], {w}, {t}, v[{acc}:{acc+15}]")
    for r in range(64):
        A(f"v_mov_b32 v{ACC+r}, 0")
    for j in range(7):
        loads(j, 0)
    A(f"s_sub_u32 s{sCnt}, s{sCnt}, 1")
    A(f"{label}_loop:")
    for j in range(7):
        A("s_waitcnt vmcnt(24)")
        mfmas(j)
        loads(j, 0)
    A(f"s_sub_u32 s{sCnt}, s{sCnt}, 1")
    A(f"s_cmp_lg_u32 s{sCnt}, 0")
    A(f"s_cbranch_scc1 {label}_loop")
    for j in range(7):
        A(f"s_waitcnt vmcnt({24-4*j})")
        mfmas(j)
    A("s_nop 15")

kernel_header(A, "gemm1_kernel")
A(f"""s_cmp_ge_u32 s2, 336
s_cbranch_scc1 g1_done
s_load_dwordx2 s[6:7], s[0:1], {KA['ws']}
s_load_dwordx2 s[4:5], s[0:1], {KA['b1']}
v_lshrrev_b32 v1, 6, v0
v_and_b32 v0, 63, v0
s_nop 0
v_readfirstlane_b32 s3, v1
s_waitcnt lgkmcnt(0)
s_lshl_b32 s24, s2, 2
s_add_u32 s24, s24, s3            ; wave tile id in [0,1344): mp = id // 42, np = id % 42""")
div_const(25, 24, 42, 1344)
A("""s_mul_i32 s26, s25, 42
s_sub_u32 s26, s24, s26           ; np
v_lshlrev_b32 v1, 4, v0
s_mul_i32 s27, s25, 2*28*1024
v_add_u32 v2, s27, v1
v_add_u32 v3, 28*1024, v2
s_mov_b32 s20, 0
s_mov_b32 s21, 4
s_cmp_ge_u32 s26, 28
s_cbranch_scc1 g1_ssm""")
srd(A, 8, 6, 7, SZ_XN, Y_T)
srd(A, 12, 6, 7, SZ_W1, W1_T)
A("""s_mul_i32 s27, s26, 2*28*1024
v_add_u32 v4, s27, v1
v_add_u32 v5, 28*1024, v4""")
FR, ACC = 16, 128
kloop(FR, ACC, False, 8, 12, 21, "g1m")
srd(A, 16, 6, 7, SZ_ACAT, ACAT_T)
A("v_lshrrev_b32 v6, 5, v0   ; h")
A("v_lshlrev_b32 v6, 3, v6   ; h*4*2 bytes")
for jj in range(2):
    A(f"s_lshl_b32 s27, s26, 7\ns_add_u32 s27, s27, {64*jj}")
    A("v_add_u32 v7, s27, v6")
    for g in range(4):
        A(f"global_load_dwordx2 v[{16+2*g}:{17+2*g}], v7, s[4:5] offset:{16*g}")
    A("s_waitcnt vmcnt(0)")
    for g in range(4):
        for q in range(2):
            A(f"v_lshlrev_b32 v{32+4*g+2*q}, 16, v{16+2*g+q}")
            A(f"v_and_b32 v{32+4*g+2*q+1}, 0xffff0000, v{16+2*g+q}")
    for i in range(2):
        acc = ACC + 16*(2*i+jj)
        for r in range(0, 16, 2):
            a, b = acc+r, acc+r+1
            bf16_round_pair(a, b, a, b, 48)
            A(f"v_add_f32 v{a}, v{a}, v{32+r}")
            A(f"v_add_f32 v{b}, v{b}, v{32+r+1}")
            bf16_round_pair(a, b, a, b, 48)
            for z in (a, b):
                A(f"v_mul_f32 v49, v{z}, v{z}")
                A(f"v_mov_b32 v50, 0xc0135761   ; -2*log2e*sqrt(2/pi)")
                A(f"v_fmac_f32 v50, 0xbdd2d3e7, v49   ; *0.044715")
                A(f"v_mul_f32 v50, v50, v{z}")
                A(f"v_exp_f32 v50, v50")
                A("s_nop 0")
                A(f"v_add_f32 v50, 1.0, v50")
                A(f"v_rcp_f32 v50, v50")
                A("s_nop 0")
                A(f"v_mul_f32 v{z}, v{z}, v50")
        for half in range(2):
            for q in range(4):
                A(f"v_cvt_pk_bf16_f32 v{52+q}, v{acc+8*half+2*q}, v{acc+8*half+2*q+1}")
            A(f"s_mul_i32 s27, s25, 2*168")
            A(f"s_add_u32 s27, s27, {168*i}")
            A(f"s_lshl_b32 s28, s26, 2")
            A(f"s_add_u32 s27, s27, s28")
            A(f"s_add_u32 s27, s27, {2*jj+half}")
            A(f"s_lshl_b32 s27, s27, 10")
            A(f"buffer_store_dwordx4 v[52:55], v1, s[16:19], s27 offen")
            A("s_nop 1")
A("s_endpgm")
A("g1_ssm:")
srd(A, 8, 6, 7, SZ_XN, XN_T)
srd(A, 12, 6, 7, SZ_BW, BW_T)
A("""s_sub_u32 s26, s26, 28
s_mul_i32 s27, s26, 2*28*1024
v_add_u32 v4, s27, v1
v_add_u32 v5, 28*1024, v4""")
kloop(FR, ACC, True, 8, 12, 21, "g1s")
srd(A, 16, 6, 7, SZ_BU, BU)
A("""v_and_b32 v6, 31, v0
v_lshrrev_b32 v7, 5, v0
v_lshlrev_b32 v6, 2, v6
v_mul_u32_u24 v7, 4*3584, v7
v_add_u32 v6, v6, v7
s_mul_i32 s27, s25, 64*3584
s_lshl_b32 s28, s26, 8
s_add_u32 s27, s27, s28
v_add_u32 v6, s27, v6""")
for i in range(2):
    for jj in range(2):
        acc = ACC + 16*(2*i+jj)
        for r in range(16):
            row = 32*i + 8*(r//4) + (r % 4)
            A(f"s_mov_b32 s28, {row*3584 + 128*jj}")
            A(f"buffer_store_dword v{acc+r}, v6, s[16:19], s28 offen")
A("g1_done:\ns_endpgm")

kernel_header(A, "scan_kernel")
A(f"""s_cmp_ge_u32 s2, 7
s_cbranch_scc1 sc_done
s_load_dwordx2 s[6:7], s[0:1], {KA['ws']}
s_load_dwordx4 s[12:15], s[0:1], {KA['lre']}
s_load_dwordx2 s[16:17], s[0:1], {KA['logdt']}
s_lshl_b32 s3, s2, 6
v_add_u32 v1, s3, v0              ; p
v_lshlrev_b32 v2, 1, v1
s_waitcnt lgkmcnt(0)
global_load_ushort v4, v2, s[12:13]
global_load_ushort v5, v2, s[14:15]
global_load_ushort v6, v2, s[16:17]
s_waitcnt vmcnt(0)
v_lshlrev_b32 v4, 16, v4          ; lre
v_lshlrev_b32 v5, 16, v5          ; lim
v_lshlrev_b32 v6, 16, v6
v_mul_f32 v6, 0x3fb8aa3b, v6
v_exp_f32 v6, v6
s_nop 0
v_cvt_pk_bf16_f32 v6, v6, v6
v_lshlrev_b32 v6, 16, v6
v_mul_f32 v7, v6, v4              ; dt*re
v_mul_f32 v8, v6, v5              ; dt*im
v_mul_f32 v7, 0x3fb8aa3b, v7
v_exp_f32 v7, v7                  ; mag
v_mul_f32 v8, 0.15915494, v8
v_fract_f32 v8, v8
v_cos_f32 v9, v8
v_sin_f32 v10, v8
s_nop 0
v_mul_f32 v9, v7, v9
v_mul_f32 v10, v7, v10
v_add_f32 v11, -1.0, v9
v_mul_f32 v12, v4, v4
v_fmac_f32 v12, v5, v5
v_rcp_f32 v12, v12
v_mul_f32 v13, v11, v4
v_fmac_f32 v13, v10, v5           ; re = (a*c + b*d)
v_mul_f32 v14, v10, v4
v_fma_f32 v14, -v11, v5, v14      ; im = (b*c - a*d)
v_mul_f32 v13, v13, v12
v_mul_f32 v14, v14, v12
v_add_f32 v13, v13, v13
v_add_f32 v14, v14, v14""")
srd(A, 8, 6, 7, SZ_BU, BU)
srd(A, 20, 6, 7, SZ_ACAT, ACAT_T)
A("""v_lshlrev_b32 v2, 2, v1          ; p*4
v_lshrrev_b32 v3, 4, v1
v_lshlrev_b32 v3, 10, v3
v_bfe_u32 v15, v1, 3, 1
v_lshlrev_b32 v15, 9, v15
v_add_u32 v3, v3, v15
v_and_b32 v15, 7, v1
v_lshl_add_u32 v3, v15, 1, v3
v_add_u32 v3, 112*1024, v3
v_add_u32 v17, 28*1024, v3        ; im
v_mov_b32 v20, 0
v_mov_b32 v21, 0
s_mov_b32 s24, 0
sc_loop:
s_mul_i32 s25, s24, 16*3584""")
for t in range(16):
    A(f"s_add_u32 s26, s25, {t*3584}")
    A(f"buffer_load_dword v{32+2*t}, v2, s[8:11], s26 offen")
    A(f"buffer_load_dword v{33+2*t}, v2, s[8:11], s26 offen offset:1792")
A("""s_lshr_b32 s27, s24, 1
s_mul_i32 s27, s27, 168*1024
s_and_b32 s28, s24, 1
s_lshl_b32 s28, s28, 8
s_add_u32 s27, s27, s28""")
for t in range(16):
    A(f"s_waitcnt vmcnt({min(63, 30-2*t + 2*t)})" if False else f"s_waitcnt vmcnt({30-2*t + 2*t})" if False else "")
    break
A("s_waitcnt vmcnt(0)")
for t in range(16):
    A(f"""v_mul_f32 v22, v9, v20
v_fma_f32 v22, -v10, v21, v22
v_mul_f32 v23, v9, v21
v_fmac_f32 v23, v10, v20
v_add_f32 v20, v22, v{32+2*t}
v_add_f32 v21, v23, v{33+2*t}
v_mul_f32 v24, v13, v20
v_fma_f32 v24, -v14, v21, v24
v_mul_f32 v25, v13, v21
v_fmac_f32 v25, v14, v20
v_sub_f32 v25, 0, v25
v_cvt_pk_bf16_f32 v24, v24, v25
v_lshrrev_b32 v25, 16, v24
s_add_u32 s26, s27, {16*t}
buffer_store_short v24, v3, s[20:23], s26 offen
buffer_store_short v25, v17, s[20:23], s26 offen""")
A("""s_add_u32 s24, s24, 1
s_cmp_lt_u32 s24, 128
s_cbranch_scc1 sc_loop
sc_done:
s_endpgm""")

kernel_header(A, "gemm2_kernel")
A(f"""s_cmp_ge_u32 s2, 224
s_cbranch_scc1 g2_done
s_load_dwordx2 s[6:7], s[0:1], {KA['ws']}
s_load_dwordx2 s[4:5], s[0:1], {KA['x']}
s_load_dwordx2 s[22:23], s[0:1], {KA['b2']}
s_load_dwordx2 s[30:31], s[0:1], {KA['out']}
v_lshrrev_b32 v1, 6, v0
v_and_b32 v6, 63, v0
s_nop 0
v_readfirstlane_b32 s3, v1
s_and_b32 s24, s2, 7
s_lshr_b32 s25, s2, 3             ; j in 0..27
s_mul_i32 s26, s25, 37
s_lshr_b32 s26, s26, 8            ; j/7
s_mul_i32 s27, s26, 7
s_sub_u32 s27, s25, s27           ; nt
s_lshl_b32 s24, s24, 2
s_add_u32 s26, s26, s24           ; mt
v_lshlrev_b32 v1, 4, v6
s_mul_i32 s28, s26, 2*168*1024
v_add_u32 v2, s28, v1
v_add_u32 v3, 168*1024, v2
s_mul_i32 s28, s27, 2*168*1024
v_add_u32 v4, s28, v1
v_add_u32 v5, 168*1024, v4""")
if MIMIC:
    A("""s_cmp_lt_u32 s3, 2
s_cselect_b32 s21, 8, 4
s_mul_i32 s20, s3, 56
s_cmp_eq_u32 s3, 3
s_cselect_b32 s20, 140, s20
s_lshl_b32 s20, s20, 10""")
else:
    A("s_mov_b32 s21, 6\ns_mul_i32 s20, s3, 42*1024")
A("s_waitcnt lgkmcnt(0)")
srd(A, 8, 6, 7, SZ_ACAT, ACAT_T)
srd(A, 12, 6, 7, SZ_W2C, W2C_T)
kloop(FR, ACC, False, 8, 12, 21, "g2")
A("""v_and_b32 v7, 31, v6
v_mul_u32_u24 v7, 272, v7
v_lshrrev_b32 v8, 5, v6
v_lshl_add_u32 v7, v8, 4, v7
s_mul_i32 s28, s3, 64*272
v_add_u32 v7, s28, v7""")
for i in range(2):
    for jj in range(2):
        acc = ACC + 16*(2*i+jj)
        for g in range(4):
            A(f"ds_write_b128 v7, v[{acc+4*g}:{acc+4*g+3}] offset:{i*32*272 + jj*128 + g*32}")
A("s_waitcnt lgkmcnt(0)\ns_barrier")
srd(A, 16, 6, 7, SZ_SKIP, SKIP)
A("""v_lshrrev_b32 v8, 4, v0
v_and_b32 v9, 15, v0
v_mul_u32_u24 v10, 272, v8
v_lshl_add_u32 v10, v9, 4, v10
s_lshl_b32 s28, s26, 6
v_add_u32 v8, s28, v8
s_lshl_b32 s28, s27, 6
v_lshl_add_u32 v9, v9, 2, s28     ; d
v_mul_u32_u24 v11, 448, v8
v_add_u32 v11, v11, v9
v_lshlrev_b32 v12, 1, v11
v_lshlrev_b32 v13, 2, v11
v_lshlrev_b32 v9, 1, v9
global_load_dwordx2 v[14:15], v9, s[22:23]
s_waitcnt vmcnt(0)
v_lshlrev_b32 v60, 16, v14
v_and_b32 v61, 0xffff0000, v14
v_lshlrev_b32 v62, 16, v15
v_and_b32 v63, 0xffff0000, v15""")
for ps in range(4):
    A(f"v_add_u32 v14, {ps*16*896}, v12")
    A(f"global_load_dwordx2 v[16:17], v14, s[4:5]")
    A(f"buffer_load_dwordx2 v[18:19], v14, s[16:19], 0 offen")
    for w in range(4):
        A(f"ds_read_b128 v[{20+4*w}:{23+4*w}], v10 offset:{w*64*272 + ps*16*272}")
    A("s_waitcnt vmcnt(0) lgkmcnt(0)")
    A("""v_lshlrev_b32 v40, 16, v16
v_and_b32 v41, 0xffff0000, v16
v_lshlrev_b32 v42, 16, v17
v_and_b32 v43, 0xffff0000, v17
v_lshlrev_b32 v44, 16, v18
v_and_b32 v45, 0xffff0000, v18
v_lshlrev_b32 v46, 16, v19
v_and_b32 v47, 0xffff0000, v19""")
    for c in range(4):
        if MIMIC:
            A(f"v_add_f32 v{20+c}, v{20+c}, v{24+c}")
            A(f"v_add_f32 v{28+c}, v{28+c}, v{32+c}")
            A(f"v_cvt_pk_bf16_f32 v48, v{20+c}, v{20+c}")
            A(f"v_lshlrev_b32 v48, 16, v48")
            A(f"v_add_f32 v48, v48, v{60+c}")
            A(f"v_cvt_pk_bf16_f32 v48, v48, v48")
            A(f"v_lshlrev_b32 v48, 16, v48")
            A(f"v_add_f32 v49, v{28+c}, v{44+c}")
            A(f"v_add_f32 v49, v{40+c}, v49")
            A(f"v_add_f32 v{52+c}, v49, v48")
        else:
            A(f"v_add_f32 v{20+c}, v{20+c}, v{24+c}")
            A(f"v_add_f32 v{28+c}, v{28+c}, v{32+c}")
            A(f"v_add_f32 v49, v{20+c}, v{28+c}")
            A(f"v_add_f32 v49, v49, v{60+c}")
            A(f"v_add_f32 v49, v49, v{44+c}")
            A(f"v_add_f32 v{52+c}, v49, v{40+c}")
        if NOISE:
            import struct
            A(f"v_mul_f32 v{52+c}, {hex(struct.unpack('<I', struct.pack('<f', 1+NOISE))[0])}, v{52+c}")
    A(f"v_add_u32 v14, {ps*16*1792}, v13")
    A(f"global_store_dwordx4 v14, v[52:55], s[30:31]")
    A("s_nop 1")
A("g2_done:\ns_endpgm")

if EXTRA:
    kernel_header(A, "nop_kernel")
    A("s_endpgm")

A('.section .rodata,"a"\n.p2align 6')
kernel_desc(A, "prep_kernel", 64, 64)
A(".p2align 6")
kernel_desc(A, "gemm1_kernel", 192, 64)
A(".p2align 6")
kernel_desc(A, "scan_kernel", 64, 64)
A(".p2align 6")
kernel_desc(A, "gemm2_kernel", 192, 64)
if EXTRA:
    A(".p2align 6")
    kernel_desc(A, "nop_kernel", 8, 16)
open(sys.argv[1], "w").write(A.text())
```
